```python
import torch

def _softmax(x, axis=-1):
    return torch.softmax(x, dim=axis)
def _gelu(x):
    return torch.nn.functional.gelu(x, approximate="tanh")
def _silu(x):
    return torch.nn.functional.silu(x)
def _sigmoid(x):
    return torch.sigmoid(x)
def _layernorm(x, axis=-1, eps=1e-5):
    m = x.mean(dim=axis, keepdim=True)
    v = x.var(dim=axis, keepdim=True, unbiased=False)
    return (x - m) / torch.sqrt(v + eps)
def _scatter_add(tgt, idx, src, axis=0):
    return tgt.clone().index_add_(axis, idx, src)
def _segment_sum(src, seg, n):
    out = torch.zeros((n,) + src.shape[1:], dtype=src.dtype)
    return out.index_add_(0, seg, src)
def _pad(x, pw):
    flat = tuple(v for pair in reversed(pw) for v in pair)
    return torch.nn.functional.pad(x, flat)

kernel_name = 'standalone__cheap_equivariant_egnn__graph'

def setup_inputs():

    _w = (lambda a: (lambda t: t.to(torch.bfloat16) if t.is_floating_point() else t)(torch.as_tensor(a)))
    N, deg, D, De = 25000, 32, 64, max(4, 1)
    E = N * deg
    return {
        "h": _w((lambda *s: torch.randn(*s, dtype=torch.bfloat16) * 0.2)(N, D)),
        "pos": _w((lambda *s: torch.randn(*s, dtype=torch.bfloat16) * 0.8)(N, 3)),
        "e_attr": _w((lambda *s: torch.randn(*s, dtype=torch.bfloat16) * 0.8)(E, De)),
        "src": _w((lambda lo, hi, *s: torch.randint(lo, hi, s))(0, N, E).to(torch.int64)),
        "dst": _w((lambda lo, hi, *s: torch.randint(lo, hi, s))(0, N, E).to(torch.int64)),
        "w_e": _w(0.1 * (lambda *s: torch.randn(*s, dtype=torch.bfloat16) * 0.8)(2 * D + 1 + De, D)),
        "w_x": _w(0.1 * (lambda *s: torch.randn(*s, dtype=torch.bfloat16) * 0.2)(D, 1)),
        "w_h": _w(0.1 * (lambda *s: torch.randn(*s, dtype=torch.bfloat16) * 0.2)(2 * D, D)),
    }

def reference(h, pos, e_attr, src, dst, w_e, w_x, w_h):
    N, D = h.shape[0], h.shape[1]
    diff = pos[dst] - pos[src]
    dist2 = torch.sum(diff * diff, axis=-1, keepdims=True)
    e_in = torch.concatenate([h[dst], h[src], dist2, e_attr], axis=-1)
    m_ij = _silu(e_in @ w_e)
    coord_scale = m_ij @ w_x
    pos_new = pos + _segment_sum(diff * coord_scale, dst, N)
    m_i = _segment_sum(m_ij, dst, N)
    h_new = h + _silu(torch.concatenate([h, m_i], axis=-1) @ w_h)
    return h_new, pos_new
```

```python
class Asm:
    def __init__(self):
        self.lines = []
    def __call__(self, s):
        for l in s.strip("\n").split("\n"):
            self.lines.append("    " + l.strip() if not l.strip().endswith(":") else l.strip())
    def label(self, l):
        self.lines.append(l + ":")
    def comment(self, c):
        self.lines.append("    ; " + c)
    def text(self):
        return "\n".join(self.lines) + "\n"

def srd(a, d, lo, hi, size):
    a(f"s_mov_b32 s{d}, s{lo}")
    a(f"s_and_b32 s{d+1}, s{hi}, 0xffff")
    a(f"s_mov_b32 s{d+2}, {size}")
    a(f"s_mov_b32 s{d+3}, 0x20000")

def kdesc(name, vgpr, sgpr):
    acc = (vgpr + 3) // 4 * 4
    return f""".amdhsa_kernel {name}
  .amdhsa_next_free_vgpr {vgpr}
  .amdhsa_next_free_sgpr {sgpr}
  .amdhsa_accum_offset {acc}
  .amdhsa_group_segment_fixed_size 0
  .amdhsa_kernarg_size 88
  .amdhsa_user_sgpr_count 2
  .amdhsa_user_sgpr_kernarg_segment_ptr 1
  .amdhsa_system_sgpr_workgroup_id_x 1
.end_amdhsa_kernel
"""
```

```python
N = 25000; E = 800000
NB = 98; NBINS = 256
CH = 3200; NCH = 250
WS_REC = 0
WS_OFF = 0xA00000
WS_POS4 = 0xA80000
WS_IMG = 0xB00000
IMG_W2 = WS_IMG
IMG_W1 = WS_IMG + 0x2000
IMG_WH = WS_IMG + 0x4000
IMG_X2 = WS_IMG - 0x800
WS_SIZE = 0x10000000
```

```python
from asmlib import *
from consts import *

K1_STAGE = 0
K1_HIST = 38400
K1_BASE = 39424
K1_LDS = 40448
K1_GRID = 255
K1_BLOCK = 800

def gen_k1():
    a = Asm()
    a.label("bin_kernel")
    a(f"""
    s_cmp_ge_u32 s2, {K1_GRID}
    s_cbranch_scc1 K1_END
    s_load_dwordx16 s[16:31], s[0:1], 0
    s_load_dwordx2 s[32:33], s[0:1], 80
    s_waitcnt lgkmcnt(0)
    """)
    srd(a, 48, 32, 33, hex(WS_SIZE))
    a(f"""
    s_cmp_ge_u32 s2, {NCH}
    s_cbranch_scc1 K1_IMG
    """)
    srd(a, 36, 24, 25, E * 4)
    srd(a, 40, 22, 23, E * 4)
    srd(a, 44, 20, 21, E * 8)
    srd(a, 52, 18, 19, N * 6)
    a(f"""
    s_mul_i32 s3, s2, 100
    v_add_u32 v3, s3, v0
    v_mul_u32_u24 v1, 6, v3
    v_mov_b32 v20, 0
    v_cmp_gt_u32 vcc, 100, v0
    s_and_saveexec_b64 s[4:5], vcc
    s_cbranch_execz K1_NOPOS1
    buffer_load_ushort v20, v1, s[52:55], 0 offen
    buffer_load_ushort v40, v1, s[52:55], 0 offen offset:2
    buffer_load_ushort v21, v1, s[52:55], 0 offen offset:4
K1_NOPOS1:
    s_mov_b64 exec, s[4:5]
    s_mul_i32 s3, s2, {CH*4}
    v_lshl_add_u32 v1, v0, 4, s3
    v_lshlrev_b32 v2, 1, v1
    buffer_load_dwordx4 v[4:7], v1, s[36:39], 0 offen
    buffer_load_dwordx4 v[8:11], v1, s[40:43], 0 offen
    buffer_load_dwordx4 v[12:15], v2, s[44:47], 0 offen
    buffer_load_dwordx4 v[16:19], v2, s[44:47], 0 offen offset:16
    v_lshlrev_b32 v22, 2, v0
    v_mov_b32 v23, 0
    v_cmp_gt_u32 vcc, 256, v0
    s_and_saveexec_b64 s[4:5], vcc
    ds_write_b32 v22, v23 offset:{K1_HIST}
    s_mov_b64 exec, s[4:5]
    v_mov_b32 v23, 1
    s_waitcnt lgkmcnt(0)
    s_barrier
    s_waitcnt vmcnt(3)
    v_cmp_gt_u32 vcc, 100, v0
    s_and_saveexec_b64 s[4:5], vcc
    s_cbranch_execz K1_NOPOS2
    v_lshl_or_b32 v20, v40, 16, v20
    v_lshlrev_b32 v3, 3, v3
    v_add_u32 v3, {WS_POS4}, v3
    buffer_store_dwordx2 v[20:21], v3, s[48:51], 0 offen
K1_NOPOS2:
    s_mov_b64 exec, s[4:5]
    """)
    for i in range(4):
        a(f"""
        v_mul_u32_u24 v{24+i}, 0xa730, v{4+i}
        v_lshrrev_b32 v{24+i}, 22, v{24+i}
        v_mul_u32_u24 v{28+i}, {NB}, v{24+i}
        v_sub_u32 v{28+i}, v{4+i}, v{28+i}
        v_lshlrev_b32 v{24+i}, 2, v{24+i}
        ds_add_rtn_u32 v{32+i}, v{24+i}, v23 offset:{K1_HIST}
        """)
    a(f"""
    v_lshrrev_b32 v22, 6, v0
    s_waitcnt lgkmcnt(0)
    s_barrier
    v_readfirstlane_b32 s6, v22
    s_nop 3
    s_cmp_lg_u32 s6, 0
    s_cbranch_scc1 K1_NOSCAN
    v_lshlrev_b32 v22, 4, v0
    ds_read_b128 v[36:39], v22 offset:{K1_HIST}
    s_waitcnt lgkmcnt(0)
    v_add_u32 v41, v36, v37
    v_add_u32 v42, v41, v38
    v_add_u32 v43, v42, v39
    v_mov_b32 v44, v43
    s_nop 1
    v_add_u32_dpp v44, v44, v44 row_shr:1 row_mask:0xf bank_mask:0xf bound_ctrl:0
    s_nop 1
    v_add_u32_dpp v44, v44, v44 row_shr:2 row_mask:0xf bank_mask:0xf bound_ctrl:0
    s_nop 1
    v_add_u32_dpp v44, v44, v44 row_shr:4 row_mask:0xf bank_mask:0xf bound_ctrl:0
    s_nop 1
    v_add_u32_dpp v44, v44, v44 row_shr:8 row_mask:0xf bank_mask:0xf bound_ctrl:0
    s_nop 1
    v_add_u32_dpp v44, v44, v44 row_bcast:15 row_mask:0xa bank_mask:0xf
    s_nop 1
    v_add_u32_dpp v44, v44, v44 row_bcast:31 row_mask:0xc bank_mask:0xf
    s_nop 1
    v_sub_u32 v44, v44, v43
    v_add_u32 v45, v44, v36
    v_add_u32 v46, v44, v41
    v_add_u32 v47, v44, v42
    ds_write_b128 v22, v[44:47] offset:{K1_BASE}
    v_lshl_or_b32 v36, v36, 16, v44
    v_lshl_or_b32 v37, v37, 16, v45
    v_lshl_or_b32 v38, v38, 16, v46
    v_lshl_or_b32 v39, v39, 16, v47
    s_lshl_b32 s3, s2, 10
    s_add_u32 s3, s3, {WS_OFF}
    v_add_u32 v22, s3, v22
    buffer_store_dwordx4 v[36:39], v22, s[48:51], 0 offen
    s_waitcnt lgkmcnt(0)
K1_NOSCAN:
    s_barrier
    """)
    for i in range(4):
        a(f"ds_read_b32 v{36+i}, v{24+i} offset:{K1_BASE}")
    a("s_waitcnt vmcnt(0)")
    for i in range(4):
        a(f"v_lshl_add_u32 v{8+i}, v{8+i}, 7, v{28+i}")
    a("s_waitcnt lgkmcnt(0)")
    for i in range(4):
        a(f"""
        v_add_u32 v{36+i}, v{36+i}, v{32+i}
        v_mul_u32_u24 v{36+i}, 12, v{36+i}
        ds_write2_b32 v{36+i}, v{12+2*i}, v{13+2*i} offset0:0 offset1:1
        ds_write_b32 v{36+i}, v{8+i} offset:8
        """)
    a(f"""
    v_lshlrev_b32 v22, 4, v0
    s_mul_i32 s3, s2, {CH*12}
    v_add_u32 v1, s3, v22
    s_waitcnt lgkmcnt(0)
    s_barrier
    ds_read_b128 v[4:7], v22
    ds_read_b128 v[8:11], v22 offset:12800
    ds_read_b128 v[12:15], v22 offset:25600
    v_add_u32 v2, 12800, v1
    v_add_u32 v3, 25600, v1
    s_waitcnt lgkmcnt(2)
    buffer_store_dwordx4 v[4:7], v1, s[48:51], 0 offen
    s_waitcnt lgkmcnt(1)
    buffer_store_dwordx4 v[8:11], v2, s[48:51], 0 offen
    s_waitcnt lgkmcnt(0)
    buffer_store_dwordx4 v[12:15], v3, s[48:51], 0 offen
    s_endpgm
    """)
    a.label("K1_IMG")
    a(f"""
    s_cmp_eq_u32 s2, 254
    s_cbranch_scc1 K1_IMGX2
    v_cmp_gt_u32 vcc, 512, v0
    s_and_saveexec_b64 s[4:5], vcc
    s_cbranch_execz K1_END
    s_cmp_ge_u32 s2, 252
    s_cselect_b32 s56, s30, s26
    s_cselect_b32 s57, s31, s27
    s_mov_b32 s58, {133*128}
    s_cselect_b32 s58, {128*128}, s58
    s_cselect_b64 s[8:9], -1, 0
    s_and_b32 s57, s57, 0xffff
    s_mov_b32 s59, 0x20000
    s_cmp_eq_u32 s2, 250
    s_cselect_b32 s6, 64, 0              ; rowadd
    s_cmp_eq_u32 s2, 253
    s_cselect_b32 s7, 64, s6
    s_sub_u32 s3, s2, 250
    s_lshl_b32 s3, s3, 13
    s_add_u32 s3, s3, {WS_IMG}
    v_lshrrev_b32 v1, 7, v0              ; s = op>>1
    v_bfe_u32 v2, v0, 6, 1               ; blk
    v_bfe_u32 v3, v0, 5, 1               ; hh
    v_and_b32 v4, 31, v0                 ; i
    v_bfe_u32 v5, v4, 2, 1
    v_lshlrev_b32 v5, 4, v5
    v_lshrrev_b32 v6, 3, v4
    v_lshl_add_u32 v5, v6, 2, v5
    v_and_b32 v6, 3, v4
    v_add_u32 v5, v5, v6
    v_cndmask_b32 v4, v4, v5, s[8:9]
    v_lshl_add_u32 v4, v2, 5, v4         ; col
    v_lshlrev_b32 v1, 4, v1
    v_lshl_add_u32 v1, v3, 3, v1
    v_add_u32 v1, s7, v1                 ; row0
    v_lshlrev_b32 v1, 7, v1
    v_lshl_add_u32 v1, v4, 1, v1
    """)
    for j in range(8):
        a(f"buffer_load_ushort v{12+j}, v1, s[56:59], 0 offen offset:{128*j}")
    a(f"""
    v_lshl_add_u32 v2, v0, 4, s3
    s_waitcnt vmcnt(0)
    v_lshl_or_b32 v8, v13, 16, v12
    v_lshl_or_b32 v9, v15, 16, v14
    v_lshl_or_b32 v10, v17, 16, v16
    v_lshl_or_b32 v11, v19, 16, v18
    buffer_store_dwordx4 v[8:11], v2, s[48:51], 0 offen
    s_endpgm
K1_IMGX2:
    v_cmp_gt_u32 vcc, 128, v0
    s_and_saveexec_b64 s[4:5], vcc
    s_cbranch_execz K1_END
    """)
    srd(a, 56, 26, 27, 133*128)
    a(f"""
    v_mov_b32 v8, 0
    v_mov_b32 v9, 0
    v_mov_b32 v10, 0
    v_mov_b32 v11, 0
    v_bfe_u32 v2, v0, 6, 1
    v_and_b32 v4, 31, v0
    v_lshl_add_u32 v4, v2, 5, v4
    v_lshlrev_b32 v1, 1, v4
    v_add_u32 v1, {128*128}, v1
    v_lshlrev_b32 v2, 4, v0
    v_add_u32 v2, {IMG_X2}, v2
    v_and_b32 v3, 32, v0
    v_cmp_eq_u32 vcc, 0, v3
    s_and_saveexec_b64 s[6:7], vcc
    buffer_load_ushort v8, v1, s[56:59], 0 offen offset:128
    buffer_load_ushort v12, v1, s[56:59], 0 offen offset:256
    buffer_load_ushort v9, v1, s[56:59], 0 offen offset:384
    buffer_load_ushort v13, v1, s[56:59], 0 offen offset:512
    buffer_load_ushort v10, v1, s[56:59], 0 offen
    s_waitcnt vmcnt(0)
    v_lshl_or_b32 v8, v12, 16, v8
    v_lshl_or_b32 v9, v13, 16, v9
    s_mov_b64 exec, s[6:7]
    buffer_store_dwordx4 v[8:11], v2, s[48:51], 0 offen
K1_END:
    s_endpgm
    """)
    return a.text()
```

```python
import sys
from asmlib import *
from consts import *
import gen_k1
HEADER = open("standalone__cheap_equivariant_egnn__graph.s.ref").read().split("; Override launch geometry")[0]
def build(k2=None):
    s = HEADER
    s += f"; @launch kernel=bin_kernel grid=({gen_k1.K1_GRID},1,1) block=({gen_k1.K1_BLOCK},1,1) lds={gen_k1.K1_LDS}\n"
    if k2:
        s += f"; @launch kernel=egnn_kernel grid=({k2.K2_GRID},1,1) block=({k2.K2_BLOCK},1,1) lds={k2.K2_LDS}\n"
    s += '.amdgcn_target "amdgcn-amd-amdhsa--gfx950"\n.text\n'
    s += ".globl bin_kernel\n.p2align 8\n.type bin_kernel,@function\n"
    s += gen_k1.gen_k1()
    if k2:
        s += ".globl egnn_kernel\n.p2align 8\n.type egnn_kernel,@function\n"
        s += k2.gen_k2()
    s += '.section .rodata,"a"\n.p2align 6\n'
    s += kdesc("bin_kernel", 48, 64)
    if k2:
        s += ".p2align 6\n" + kdesc("egnn_kernel", k2.K2_VGPR, k2.K2_SGPR)
    return s
if __name__ == "__main__":
    out = sys.argv[1]
    k2 = None
    if len(sys.argv) > 2:
        import importlib
        k2 = importlib.import_module(sys.argv[2])
    open(out, "w").write(build(k2))
```

```python
from asmlib import *
from consts import *

K1_STAGE = 0
K1_HIST = 38400
K1_BASE = 39424
K1_LDS = 40448
K1_GRID = 255
K1_BLOCK = 800

import os
K1ST = int(os.environ.get("K1ST", "0"))
def st(idx):
    if not K1ST: return ""
    return f"""
    s_memrealtime s[62:63]
    s_waitcnt lgkmcnt(0)
    s_mov_b32 s{8+idx}, s62
    """
def st_out():
    if not K1ST: return ""
    t = """
    v_lshrrev_b32 v22, 6, v0
    s_nop 0
    v_readfirstlane_b32 s6, v22
    s_mul_i32 s63, s2, 1024
    s_lshl_b32 s62, s6, 6
    s_add_u32 s63, s63, s62
    s_add_u32 s63, s63, 0xE00000
    """
    for i in range(8): t += f"v_mov_b32 v{24+i}, s{8+i}\n"
    t += "buffer_store_dwordx4 v[24:27], off, s[48:51], s63\nbuffer_store_dwordx4 v[28:31], off, s[48:51], s63 offset:16\n"
    return t
def gen_k1():
    a = Asm()
    a.label("bin_kernel")
    a(f"""
    s_cmp_ge_u32 s2, {K1_GRID}
    s_cbranch_scc1 K1_END
    s_load_dwordx16 s[16:31], s[0:1], 0
    s_load_dwordx2 s[32:33], s[0:1], 80
    s_waitcnt lgkmcnt(0)
    """)
    srd(a, 48, 32, 33, hex(WS_SIZE))
    a(f"""
    s_cmp_ge_u32 s2, {NCH}
    s_cbranch_scc1 K1_IMG
    """)
    srd(a, 36, 24, 25, E * 4)
    srd(a, 40, 22, 23, E * 4)
    srd(a, 44, 20, 21, E * 8)
    srd(a, 52, 18, 19, N * 6)
    a(f"""
    {st(0)}
    s_mul_i32 s3, s2, 100
    v_add_u32 v3, s3, v0
    v_mul_u32_u24 v1, 6, v3
    v_mov_b32 v20, 0
    v_cmp_gt_u32 vcc, 100, v0
    s_and_saveexec_b64 s[4:5], vcc
    s_cbranch_execz K1_NOPOS1
    buffer_load_ushort v20, v1, s[52:55], 0 offen
    buffer_load_ushort v40, v1, s[52:55], 0 offen offset:2
    buffer_load_ushort v21, v1, s[52:55], 0 offen offset:4
K1_NOPOS1:
    s_mov_b64 exec, s[4:5]
    s_mul_i32 s3, s2, {CH*4}
    v_lshl_add_u32 v1, v0, 4, s3
    v_lshlrev_b32 v2, 1, v1
    buffer_load_dwordx4 v[4:7], v1, s[36:39], 0 offen nt
    buffer_load_dwordx4 v[8:11], v1, s[40:43], 0 offen nt
    buffer_load_dwordx4 v[12:15], v2, s[44:47], 0 offen nt
    buffer_load_dwordx4 v[16:19], v2, s[44:47], 0 offen offset:16 nt
    v_lshlrev_b32 v22, 2, v0
    v_mov_b32 v23, 0
    v_cmp_gt_u32 vcc, 256, v0
    s_and_saveexec_b64 s[4:5], vcc
    ds_write_b32 v22, v23 offset:{K1_HIST}
    s_mov_b64 exec, s[4:5]
    v_mov_b32 v23, 1
    s_waitcnt lgkmcnt(0)
    s_barrier
    s_waitcnt vmcnt(3)
    {st(1)}
    v_cmp_gt_u32 vcc, 100, v0
    s_and_saveexec_b64 s[4:5], vcc
    s_cbranch_execz K1_NOPOS2
    v_lshlrev_b32 v42, 16, v21
    v_lshlrev_b32 v41, 16, v40
    v_lshlrev_b32 v40, 16, v20
    v_mov_b32 v43, 0
    v_lshlrev_b32 v3, 4, v3
    v_add_u32 v3, {WS_POS4}, v3
    buffer_store_dwordx4 v[40:43], v3, s[48:51], 0 offen
    s_nop 1
K1_NOPOS2:
    s_mov_b64 exec, s[4:5]
    """)
    for i in range(4):
        a(f"""
        v_mul_u32_u24 v{24+i}, 0xa730, v{4+i}
        v_lshrrev_b32 v{24+i}, 22, v{24+i}
        v_mul_u32_u24 v{28+i}, {NB}, v{24+i}
        v_sub_u32 v{28+i}, v{4+i}, v{28+i}
        v_lshlrev_b32 v{24+i}, 2, v{24+i}
        ds_add_rtn_u32 v{32+i}, v{24+i}, v23 offset:{K1_HIST}
        """)
    a(f"""
    v_lshrrev_b32 v22, 6, v0
    s_waitcnt lgkmcnt(0)
    s_barrier
    {st(2)}
    v_readfirstlane_b32 s6, v22
    s_nop 3
    s_cmp_lg_u32 s6, 0
    s_cbranch_scc1 K1_NOSCAN
    v_lshlrev_b32 v22, 4, v0
    ds_read_b128 v[36:39], v22 offset:{K1_HIST}
    s_waitcnt lgkmcnt(0)
    v_add_u32 v41, v36, v37
    v_add_u32 v42, v41, v38
    v_add_u32 v43, v42, v39
    v_mov_b32 v44, v43
    s_nop 1
    v_add_u32_dpp v44, v44, v44 row_shr:1 row_mask:0xf bank_mask:0xf bound_ctrl:0
    s_nop 1
    v_add_u32_dpp v44, v44, v44 row_shr:2 row_mask:0xf bank_mask:0xf bound_ctrl:0
    s_nop 1
    v_add_u32_dpp v44, v44, v44 row_shr:4 row_mask:0xf bank_mask:0xf bound_ctrl:0
    s_nop 1
    v_add_u32_dpp v44, v44, v44 row_shr:8 row_mask:0xf bank_mask:0xf bound_ctrl:0
    s_nop 1
    v_add_u32_dpp v44, v44, v44 row_bcast:15 row_mask:0xa bank_mask:0xf
    s_nop 1
    v_add_u32_dpp v44, v44, v44 row_bcast:31 row_mask:0xc bank_mask:0xf
    s_nop 1
    v_sub_u32 v44, v44, v43
    v_add_u32 v45, v44, v36
    v_add_u32 v46, v44, v41
    v_add_u32 v47, v44, v42
    ds_write_b128 v22, v[44:47] offset:{K1_BASE}
    v_lshl_or_b32 v36, v36, 16, v44
    v_lshl_or_b32 v37, v37, 16, v45
    v_lshl_or_b32 v38, v38, 16, v46
    v_lshl_or_b32 v39, v39, 16, v47
    s_lshl_b32 s3, s2, 10
    s_add_u32 s3, s3, {WS_OFF}
    v_add_u32 v22, s3, v22
    buffer_store_dwordx4 v[36:39], v22, s[48:51], 0 offen
    s_waitcnt lgkmcnt(0)
K1_NOSCAN:
    s_barrier
    {st(3)}
    """)
    for i in range(4):
        a(f"ds_read_b32 v{36+i}, v{24+i} offset:{K1_BASE}")
    a("s_waitcnt vmcnt(0)")
    a(st(4))
    for i in range(4):
        a(f"v_lshl_add_u32 v{8+i}, v{28+i}, 20, v{8+i}")
    a("s_waitcnt lgkmcnt(0)")
    for i in range(4):
        a(f"""
        v_add_u32 v{36+i}, v{36+i}, v{32+i}
        v_mul_u32_u24 v{36+i}, 12, v{36+i}
        ds_write2_b32 v{36+i}, v{12+2*i}, v{13+2*i} offset0:0 offset1:1
        ds_write_b32 v{36+i}, v{8+i} offset:8
        """)
    a(f"""
    v_lshlrev_b32 v22, 4, v0
    s_mul_i32 s3, s2, {CH*12}
    v_add_u32 v1, s3, v22
    s_waitcnt lgkmcnt(0)
    s_barrier
    {st(5)}
    ds_read_b128 v[4:7], v22
    ds_read_b128 v[8:11], v22 offset:12800
    ds_read_b128 v[12:15], v22 offset:25600
    v_add_u32 v2, 12800, v1
    v_add_u32 v3, 25600, v1
    s_waitcnt lgkmcnt(2)
    buffer_store_dwordx4 v[4:7], v1, s[48:51], 0 offen nt
    s_waitcnt lgkmcnt(1)
    buffer_store_dwordx4 v[8:11], v2, s[48:51], 0 offen nt
    s_waitcnt lgkmcnt(0)
    buffer_store_dwordx4 v[12:15], v3, s[48:51], 0 offen nt
    {st(6)}
    {"s_waitcnt vmcnt(0)" if K1ST else ""}
    {st(7)}
    {st_out()}
    s_endpgm
    """)
    a.label("K1_IMG")
    a(f"""
    s_cmp_eq_u32 s2, 254
    s_cbranch_scc1 K1_IMGX2
    v_cmp_gt_u32 vcc, 512, v0
    s_and_saveexec_b64 s[4:5], vcc
    s_cbranch_execz K1_END
    s_cmp_ge_u32 s2, 252
    s_cselect_b32 s56, s30, s26
    s_cselect_b32 s57, s31, s27
    s_mov_b32 s58, {133*128}
    s_cselect_b32 s58, {128*128}, s58
    s_cselect_b64 s[8:9], -1, 0
    s_and_b32 s57, s57, 0xffff
    s_mov_b32 s59, 0x20000
    s_cmp_eq_u32 s2, 250
    s_cselect_b32 s6, 64, 0              ; rowadd
    s_cmp_eq_u32 s2, 253
    s_cselect_b32 s7, 64, s6
    s_sub_u32 s3, s2, 250
    s_lshl_b32 s3, s3, 13
    s_add_u32 s3, s3, {WS_IMG}
    v_lshrrev_b32 v1, 7, v0              ; s = op>>1
    v_bfe_u32 v2, v0, 6, 1               ; blk
    v_bfe_u32 v3, v0, 5, 1               ; hh
    v_and_b32 v4, 31, v0                 ; i
    v_bfe_u32 v5, v4, 2, 1
    v_lshlrev_b32 v5, 4, v5
    v_lshrrev_b32 v6, 3, v4
    v_lshl_add_u32 v5, v6, 2, v5
    v_and_b32 v6, 3, v4
    v_add_u32 v5, v5, v6
    v_cndmask_b32 v4, v4, v5, s[8:9]
    v_lshl_add_u32 v4, v2, 5, v4         ; col
    v_lshlrev_b32 v1, 4, v1
    v_lshl_add_u32 v1, v3, 3, v1
    v_add_u32 v1, s7, v1                 ; row0
    v_lshlrev_b32 v1, 7, v1
    v_lshl_add_u32 v1, v4, 1, v1
    """)
    for j in range(8):
        a(f"buffer_load_ushort v{12+j}, v1, s[56:59], 0 offen offset:{128*j}")
    a(f"""
    v_lshl_add_u32 v2, v0, 4, s3
    s_waitcnt vmcnt(0)
    v_lshl_or_b32 v8, v13, 16, v12
    v_lshl_or_b32 v9, v15, 16, v14
    v_lshl_or_b32 v10, v17, 16, v16
    v_lshl_or_b32 v11, v19, 16, v18
    buffer_store_dwordx4 v[8:11], v2, s[48:51], 0 offen
    s_endpgm
K1_IMGX2:
    v_cmp_gt_u32 vcc, 128, v0
    s_and_saveexec_b64 s[4:5], vcc
    s_cbranch_execz K1_END
    """)
    srd(a, 56, 26, 27, 133*128)
    a(f"""
    v_mov_b32 v8, 0
    v_mov_b32 v9, 0
    v_mov_b32 v10, 0
    v_mov_b32 v11, 0
    v_bfe_u32 v2, v0, 6, 1
    v_and_b32 v4, 31, v0
    v_lshl_add_u32 v4, v2, 5, v4
    v_lshlrev_b32 v1, 1, v4
    v_add_u32 v1, {128*128}, v1
    v_lshlrev_b32 v2, 4, v0
    v_add_u32 v2, {IMG_X2}, v2
    v_and_b32 v3, 32, v0
    v_cmp_eq_u32 vcc, 0, v3
    s_and_saveexec_b64 s[6:7], vcc
    buffer_load_ushort v8, v1, s[56:59], 0 offen offset:128
    buffer_load_ushort v12, v1, s[56:59], 0 offen offset:256
    buffer_load_ushort v9, v1, s[56:59], 0 offen offset:384
    buffer_load_ushort v13, v1, s[56:59], 0 offen offset:512
    buffer_load_ushort v10, v1, s[56:59], 0 offen
    s_waitcnt vmcnt(0)
    v_lshl_or_b32 v8, v12, 16, v8
    v_lshl_or_b32 v9, v13, 16, v9
    s_mov_b64 exec, s[6:7]
    buffer_store_dwordx4 v[8:11], v2, s[48:51], 0 offen
K1_END:
    s_endpgm
    """)
    return a.text()
```

```python
from asmlib import *
from consts import *

K1_STAGE = 0
K1_HIST = 38400
K1_BASE = 39424
K1_LDS = 40448
K1_GRID = 255
K1_BLOCK = 800

import os
K1ST = int(os.environ.get("K1ST", "0"))
CPF1 = int(os.environ.get("CPF1", "1"))
CPF_END = os.environ.get("CPF_END", "K2_CODE_END")
def st(idx):
    if not K1ST: return ""
    return f"""
    s_memrealtime s[62:63]
    s_waitcnt lgkmcnt(0)
    s_mov_b32 s{8+idx}, s62
    """
def st_out():
    if not K1ST: return ""
    t = """
    v_lshrrev_b32 v22, 6, v0
    s_nop 0
    v_readfirstlane_b32 s6, v22
    s_mul_i32 s63, s2, 1024
    s_lshl_b32 s62, s6, 6
    s_add_u32 s63, s63, s62
    s_add_u32 s63, s63, 0xE00000
    """
    for i in range(8): t += f"v_mov_b32 v{24+i}, s{8+i}\n"
    t += "buffer_store_dwordx4 v[24:27], off, s[48:51], s63\nbuffer_store_dwordx4 v[28:31], off, s[48:51], s63 offset:16\n"
    return t
def gen_k1():
    a = Asm()
    a.label("bin_kernel")
    a(f"""
    s_getpc_b64 s[56:57]
    s_sub_u32 s56, s56, 4
    s_subb_u32 s57, s57, 0
    s_and_b32 s57, s57, 0xffff
    s_cmp_ge_u32 s2, {K1_GRID}
    s_cbranch_scc1 K1_END
    """)
    if CPF1:
        a(f"""
    s_mov_b32 s58, {CPF_END}-bin_kernel
    s_mov_b32 s59, 0x20000
    v_lshlrev_b32 v1, 4, v0
    v_add_u32 v2, 12800, v1
    buffer_load_dwordx4 v[44:47], v1, s[56:59], 0 offen
    buffer_load_dwordx4 v[44:47], v2, s[56:59], 0 offen
    """)
    a(f"""
    s_load_dwordx16 s[16:31], s[0:1], 0
    s_load_dwordx2 s[32:33], s[0:1], 80
    s_waitcnt lgkmcnt(0)
    """)
    srd(a, 48, 32, 33, hex(WS_SIZE))
    a(f"""
    s_cmp_ge_u32 s2, {NCH}
    s_cbranch_scc1 K1_IMG
    """)
    srd(a, 36, 24, 25, E * 4)
    srd(a, 40, 22, 23, E * 4)
    srd(a, 44, 20, 21, E * 8)
    srd(a, 52, 18, 19, N * 6)
    a(f"""
    {st(0)}
    s_mul_i32 s3, s2, 100
    v_add_u32 v3, s3, v0
    v_mul_u32_u24 v1, 6, v3
    v_mov_b32 v20, 0
    v_cmp_gt_u32 vcc, 100, v0
    s_and_saveexec_b64 s[4:5], vcc
    s_cbranch_execz K1_NOPOS1
    buffer_load_ushort v20, v1, s[52:55], 0 offen
    buffer_load_ushort v40, v1, s[52:55], 0 offen offset:2
    buffer_load_ushort v21, v1, s[52:55], 0 offen offset:4
K1_NOPOS1:
    s_mov_b64 exec, s[4:5]
    s_mul_i32 s3, s2, {CH*4}
    v_lshl_add_u32 v1, v0, 4, s3
    v_lshlrev_b32 v2, 1, v1
    buffer_load_dwordx4 v[4:7], v1, s[36:39], 0 offen nt
    buffer_load_dwordx4 v[8:11], v1, s[40:43], 0 offen nt
    buffer_load_dwordx4 v[12:15], v2, s[44:47], 0 offen nt
    buffer_load_dwordx4 v[16:19], v2, s[44:47], 0 offen offset:16 nt
    v_lshlrev_b32 v22, 2, v0
    v_mov_b32 v23, 0
    v_cmp_gt_u32 vcc, 256, v0
    s_and_saveexec_b64 s[4:5], vcc
    ds_write_b32 v22, v23 offset:{K1_HIST}
    s_mov_b64 exec, s[4:5]
    v_mov_b32 v23, 1
    s_waitcnt lgkmcnt(0)
    s_barrier
    s_waitcnt vmcnt(3)
    {st(1)}
    v_cmp_gt_u32 vcc, 100, v0
    s_and_saveexec_b64 s[4:5], vcc
    s_cbranch_execz K1_NOPOS2
    v_lshlrev_b32 v42, 16, v21
    v_lshlrev_b32 v41, 16, v40
    v_lshlrev_b32 v40, 16, v20
    v_mov_b32 v43, 0
    v_lshlrev_b32 v3, 4, v3
    v_add_u32 v3, {WS_POS4}, v3
    buffer_store_dwordx4 v[40:43], v3, s[48:51], 0 offen
    s_nop 1
K1_NOPOS2:
    s_mov_b64 exec, s[4:5]
    """)
    for i in range(4):
        a(f"""
        v_mul_u32_u24 v{24+i}, 0xa730, v{4+i}
        v_lshrrev_b32 v{24+i}, 22, v{24+i}
        v_mul_u32_u24 v{28+i}, {NB}, v{24+i}
        v_sub_u32 v{28+i}, v{4+i}, v{28+i}
        v_lshlrev_b32 v{24+i}, 2, v{24+i}
        ds_add_rtn_u32 v{32+i}, v{24+i}, v23 offset:{K1_HIST}
        """)
    a(f"""
    v_lshrrev_b32 v22, 6, v0
    s_waitcnt lgkmcnt(0)
    s_barrier
    {st(2)}
    v_readfirstlane_b32 s6, v22
    s_nop 3
    s_cmp_lg_u32 s6, 0
    s_cbranch_scc1 K1_NOSCAN
    v_lshlrev_b32 v22, 4, v0
    ds_read_b128 v[36:39], v22 offset:{K1_HIST}
    s_waitcnt lgkmcnt(0)
    v_add_u32 v41, v36, v37
    v_add_u32 v42, v41, v38
    v_add_u32 v43, v42, v39
    v_mov_b32 v44, v43
    s_nop 1
    v_add_u32_dpp v44, v44, v44 row_shr:1 row_mask:0xf bank_mask:0xf bound_ctrl:0
    s_nop 1
    v_add_u32_dpp v44, v44, v44 row_shr:2 row_mask:0xf bank_mask:0xf bound_ctrl:0
    s_nop 1
    v_add_u32_dpp v44, v44, v44 row_shr:4 row_mask:0xf bank_mask:0xf bound_ctrl:0
    s_nop 1
    v_add_u32_dpp v44, v44, v44 row_shr:8 row_mask:0xf bank_mask:0xf bound_ctrl:0
    s_nop 1
    v_add_u32_dpp v44, v44, v44 row_bcast:15 row_mask:0xa bank_mask:0xf
    s_nop 1
    v_add_u32_dpp v44, v44, v44 row_bcast:31 row_mask:0xc bank_mask:0xf
    s_nop 1
    v_sub_u32 v44, v44, v43
    v_add_u32 v45, v44, v36
    v_add_u32 v46, v44, v41
    v_add_u32 v47, v44, v42
    ds_write_b128 v22, v[44:47] offset:{K1_BASE}
    v_lshl_or_b32 v36, v36, 16, v44
    v_lshl_or_b32 v37, v37, 16, v45
    v_lshl_or_b32 v38, v38, 16, v46
    v_lshl_or_b32 v39, v39, 16, v47
    s_lshl_b32 s3, s2, 10
    s_add_u32 s3, s3, {WS_OFF}
    v_add_u32 v22, s3, v22
    buffer_store_dwordx4 v[36:39], v22, s[48:51], 0 offen
    s_waitcnt lgkmcnt(0)
K1_NOSCAN:
    s_barrier
    {st(3)}
    """)
    for i in range(4):
        a(f"ds_read_b32 v{36+i}, v{24+i} offset:{K1_BASE}")
    a("s_waitcnt vmcnt(0)")
    a(st(4))
    for i in range(4):
        a(f"v_lshl_add_u32 v{8+i}, v{28+i}, 20, v{8+i}")
    a("s_waitcnt lgkmcnt(0)")
    for i in range(4):
        a(f"""
        v_add_u32 v{36+i}, v{36+i}, v{32+i}
        v_mul_u32_u24 v{36+i}, 12, v{36+i}
        ds_write2_b32 v{36+i}, v{12+2*i}, v{13+2*i} offset0:0 offset1:1
        ds_write_b32 v{36+i}, v{8+i} offset:8
        """)
    a(f"""
    v_lshlrev_b32 v22, 4, v0
    s_mul_i32 s3, s2, {CH*12}
    v_add_u32 v1, s3, v22
    s_waitcnt lgkmcnt(0)
    s_barrier
    {st(5)}
    ds_read_b128 v[4:7], v22
    ds_read_b128 v[8:11], v22 offset:12800
    ds_read_b128 v[12:15], v22 offset:25600
    v_add_u32 v2, 12800, v1
    v_add_u32 v3, 25600, v1
    s_waitcnt lgkmcnt(2)
    buffer_store_dwordx4 v[4:7], v1, s[48:51], 0 offen nt
    s_waitcnt lgkmcnt(1)
    buffer_store_dwordx4 v[8:11], v2, s[48:51], 0 offen nt
    s_waitcnt lgkmcnt(0)
    buffer_store_dwordx4 v[12:15], v3, s[48:51], 0 offen nt
    {st(6)}
    {"s_waitcnt vmcnt(0)" if K1ST else ""}
    {st(7)}
    {st_out()}
    s_endpgm
    """)
    a.label("K1_IMG")
    a(f"""
    s_cmp_eq_u32 s2, 254
    s_cbranch_scc1 K1_IMGX2
    v_cmp_gt_u32 vcc, 512, v0
    s_and_saveexec_b64 s[4:5], vcc
    s_cbranch_execz K1_END
    s_cmp_ge_u32 s2, 252
    s_cselect_b32 s56, s30, s26
    s_cselect_b32 s57, s31, s27
    s_mov_b32 s58, {133*128}
    s_cselect_b32 s58, {128*128}, s58
    s_cselect_b64 s[8:9], -1, 0
    s_and_b32 s57, s57, 0xffff
    s_mov_b32 s59, 0x20000
    s_cmp_eq_u32 s2, 250
    s_cselect_b32 s6, 64, 0              ; rowadd
    s_cmp_eq_u32 s2, 253
    s_cselect_b32 s7, 64, s6
    s_sub_u32 s3, s2, 250
    s_lshl_b32 s3, s3, 13
    s_add_u32 s3, s3, {WS_IMG}
    v_lshrrev_b32 v1, 7, v0              ; s = op>>1
    v_bfe_u32 v2, v0, 6, 1               ; blk
    v_bfe_u32 v3, v0, 5, 1               ; hh
    v_and_b32 v4, 31, v0                 ; i
    v_bfe_u32 v5, v4, 2, 1
    v_lshlrev_b32 v5, 4, v5
    v_lshrrev_b32 v6, 3, v4
    v_lshl_add_u32 v5, v6, 2, v5
    v_and_b32 v6, 3, v4
    v_add_u32 v5, v5, v6
    v_cndmask_b32 v4, v4, v5, s[8:9]
    v_lshl_add_u32 v4, v2, 5, v4         ; col
    v_lshlrev_b32 v1, 4, v1
    v_lshl_add_u32 v1, v3, 3, v1
    v_add_u32 v1, s7, v1                 ; row0
    v_lshlrev_b32 v1, 7, v1
    v_lshl_add_u32 v1, v4, 1, v1
    """)
    for j in range(8):
        a(f"buffer_load_ushort v{12+j}, v1, s[56:59], 0 offen offset:{128*j}")
    a(f"""
    v_lshl_add_u32 v2, v0, 4, s3
    s_waitcnt vmcnt(0)
    v_lshl_or_b32 v8, v13, 16, v12
    v_lshl_or_b32 v9, v15, 16, v14
    v_lshl_or_b32 v10, v17, 16, v16
    v_lshl_or_b32 v11, v19, 16, v18
    buffer_store_dwordx4 v[8:11], v2, s[48:51], 0 offen
    s_endpgm
K1_IMGX2:
    v_cmp_gt_u32 vcc, 128, v0
    s_and_saveexec_b64 s[4:5], vcc
    s_cbranch_execz K1_END
    """)
    srd(a, 56, 26, 27, 133*128)
    a(f"""
    v_mov_b32 v8, 0
    v_mov_b32 v9, 0
    v_mov_b32 v10, 0
    v_mov_b32 v11, 0
    v_bfe_u32 v2, v0, 6, 1
    v_and_b32 v4, 31, v0
    v_lshl_add_u32 v4, v2, 5, v4
    v_lshlrev_b32 v1, 1, v4
    v_add_u32 v1, {128*128}, v1
    v_lshlrev_b32 v2, 4, v0
    v_add_u32 v2, {IMG_X2}, v2
    v_and_b32 v3, 32, v0
    v_cmp_eq_u32 vcc, 0, v3
    s_and_saveexec_b64 s[6:7], vcc
    buffer_load_ushort v8, v1, s[56:59], 0 offen offset:128
    buffer_load_ushort v12, v1, s[56:59], 0 offen offset:256
    buffer_load_ushort v9, v1, s[56:59], 0 offen offset:384
    buffer_load_ushort v13, v1, s[56:59], 0 offen offset:512
    buffer_load_ushort v10, v1, s[56:59], 0 offen
    s_waitcnt vmcnt(0)
    v_lshl_or_b32 v8, v12, 16, v8
    v_lshl_or_b32 v9, v13, 16, v9
    s_mov_b64 exec, s[6:7]
    buffer_store_dwordx4 v[8:11], v2, s[48:51], 0 offen
K1_END:
    s_endpgm
    """)
    return a.text()
```

```python
from asmlib import *
from consts import *

K1_STAGE = 0
K1_HIST = 38400
K1_BASE = 39424
K1_LDS = 40448
K1_GRID = 255
K1_BLOCK = 800

import os
K1ST = int(os.environ.get("K1ST", "0"))
CPF1 = int(os.environ.get("CPF1", "0"))
HPF = int(os.environ.get("HPF", "0"))
CPF_END = os.environ.get("CPF_END", "K2_CODE_END")
def st(idx):
    if not K1ST: return ""
    return f"""
    s_memrealtime s[62:63]
    s_waitcnt lgkmcnt(0)
    s_mov_b32 s{8+idx}, s62
    """
def st_out():
    if not K1ST: return ""
    t = """
    v_lshrrev_b32 v22, 6, v0
    s_nop 0
    v_readfirstlane_b32 s6, v22
    s_mul_i32 s63, s2, 1024
    s_lshl_b32 s62, s6, 6
    s_add_u32 s63, s63, s62
    s_add_u32 s63, s63, 0xE00000
    """
    for i in range(8): t += f"v_mov_b32 v{24+i}, s{8+i}\n"
    t += "buffer_store_dwordx4 v[24:27], off, s[48:51], s63\nbuffer_store_dwordx4 v[28:31], off, s[48:51], s63 offset:16\n"
    return t
def gen_k1():
    a = Asm()
    a.label("bin_kernel")
    a(f"""
    s_getpc_b64 s[56:57]
    s_sub_u32 s56, s56, 4
    s_subb_u32 s57, s57, 0
    s_and_b32 s57, s57, 0xffff
    s_cmp_ge_u32 s2, {K1_GRID}
    s_cbranch_scc1 K1_END
    """)
    if CPF1:
        a(f"""
    s_mov_b32 s58, {CPF_END}-bin_kernel
    s_mov_b32 s59, 0x20000
    v_lshlrev_b32 v1, 4, v0
    v_add_u32 v2, 12800, v1
    buffer_load_dwordx4 v[44:47], v1, s[56:59], 0 offen
    buffer_load_dwordx4 v[44:47], v2, s[56:59], 0 offen
    """)
    a(f"""
    s_load_dwordx16 s[16:31], s[0:1], 0
    s_load_dwordx2 s[32:33], s[0:1], 80
    s_waitcnt lgkmcnt(0)
    """)
    srd(a, 48, 32, 33, hex(WS_SIZE))
    a(f"""
    s_cmp_ge_u32 s2, {NCH}
    s_cbranch_scc1 K1_IMG
    """)
    srd(a, 36, 24, 25, E * 4)
    srd(a, 40, 22, 23, E * 4)
    srd(a, 44, 20, 21, E * 8)
    srd(a, 52, 18, 19, N * 6)
    a(f"""
    {st(0)}
    s_mul_i32 s3, s2, 100
    v_add_u32 v3, s3, v0
    v_mul_u32_u24 v1, 6, v3
    v_mov_b32 v20, 0
    v_cmp_gt_u32 vcc, 100, v0
    s_and_saveexec_b64 s[4:5], vcc
    s_cbranch_execz K1_NOPOS1
    buffer_load_ushort v20, v1, s[52:55], 0 offen
    buffer_load_ushort v40, v1, s[52:55], 0 offen offset:2
    buffer_load_ushort v21, v1, s[52:55], 0 offen offset:4
K1_NOPOS1:
    s_mov_b64 exec, s[4:5]
    s_mul_i32 s3, s2, {CH*4}
    v_lshl_add_u32 v1, v0, 4, s3
    v_lshlrev_b32 v2, 1, v1
    buffer_load_dwordx4 v[4:7], v1, s[36:39], 0 offen nt
    buffer_load_dwordx4 v[8:11], v1, s[40:43], 0 offen nt
    buffer_load_dwordx4 v[12:15], v2, s[44:47], 0 offen nt
    buffer_load_dwordx4 v[16:19], v2, s[44:47], 0 offen offset:16 nt
    {"s_mov_b32 s56, s16" if HPF else ""}
    {"s_and_b32 s57, s17, 0xffff" if HPF else ""}
    {"s_mov_b32 s58, 3200000" if HPF else ""}
    {"s_mov_b32 s59, 0x20000" if HPF else ""}
    {"buffer_load_dwordx4 v[44:47], v1, s[56:59], 0 offen" if HPF else ""}
    v_lshlrev_b32 v22, 2, v0
    v_mov_b32 v23, 0
    v_cmp_gt_u32 vcc, 256, v0
    s_and_saveexec_b64 s[4:5], vcc
    ds_write_b32 v22, v23 offset:{K1_HIST}
    s_mov_b64 exec, s[4:5]
    v_mov_b32 v23, 1
    s_waitcnt lgkmcnt(0)
    s_barrier
    s_waitcnt vmcnt({4 if HPF else 3})
    {st(1)}
    v_cmp_gt_u32 vcc, 100, v0
    s_and_saveexec_b64 s[4:5], vcc
    s_cbranch_execz K1_NOPOS2
    v_lshlrev_b32 v42, 16, v21
    v_lshlrev_b32 v41, 16, v40
    v_lshlrev_b32 v40, 16, v20
    v_mov_b32 v43, 0
    v_lshlrev_b32 v3, 4, v3
    v_add_u32 v3, {WS_POS4}, v3
    buffer_store_dwordx4 v[40:43], v3, s[48:51], 0 offen
    s_nop 1
K1_NOPOS2:
    s_mov_b64 exec, s[4:5]
    """)
    for i in range(4):
        a(f"""
        v_mul_u32_u24 v{24+i}, 0xa730, v{4+i}
        v_lshrrev_b32 v{24+i}, 22, v{24+i}
        v_mul_u32_u24 v{28+i}, {NB}, v{24+i}
        v_sub_u32 v{28+i}, v{4+i}, v{28+i}
        v_lshlrev_b32 v{24+i}, 2, v{24+i}
        ds_add_rtn_u32 v{32+i}, v{24+i}, v23 offset:{K1_HIST}
        """)
    a(f"""
    v_lshrrev_b32 v22, 6, v0
    s_waitcnt lgkmcnt(0)
    s_barrier
    {st(2)}
    v_readfirstlane_b32 s6, v22
    s_nop 3
    s_cmp_lg_u32 s6, 0
    s_cbranch_scc1 K1_NOSCAN
    v_lshlrev_b32 v22, 4, v0
    ds_read_b128 v[36:39], v22 offset:{K1_HIST}
    s_waitcnt {"vmcnt(0) " if HPF else ""}lgkmcnt(0)
    v_add_u32 v41, v36, v37
    v_add_u32 v42, v41, v38
    v_add_u32 v43, v42, v39
    v_mov_b32 v44, v43
    s_nop 1
    v_add_u32_dpp v44, v44, v44 row_shr:1 row_mask:0xf bank_mask:0xf bound_ctrl:0
    s_nop 1
    v_add_u32_dpp v44, v44, v44 row_shr:2 row_mask:0xf bank_mask:0xf bound_ctrl:0
    s_nop 1
    v_add_u32_dpp v44, v44, v44 row_shr:4 row_mask:0xf bank_mask:0xf bound_ctrl:0
    s_nop 1
    v_add_u32_dpp v44, v44, v44 row_shr:8 row_mask:0xf bank_mask:0xf bound_ctrl:0
    s_nop 1
    v_add_u32_dpp v44, v44, v44 row_bcast:15 row_mask:0xa bank_mask:0xf
    s_nop 1
    v_add_u32_dpp v44, v44, v44 row_bcast:31 row_mask:0xc bank_mask:0xf
    s_nop 1
    v_sub_u32 v44, v44, v43
    v_add_u32 v45, v44, v36
    v_add_u32 v46, v44, v41
    v_add_u32 v47, v44, v42
    ds_write_b128 v22, v[44:47] offset:{K1_BASE}
    v_lshl_or_b32 v36, v36, 16, v44
    v_lshl_or_b32 v37, v37, 16, v45
    v_lshl_or_b32 v38, v38, 16, v46
    v_lshl_or_b32 v39, v39, 16, v47
    s_lshl_b32 s3, s2, 10
    s_add_u32 s3, s3, {WS_OFF}
    v_add_u32 v22, s3, v22
    buffer_store_dwordx4 v[36:39], v22, s[48:51], 0 offen
    s_waitcnt lgkmcnt(0)
K1_NOSCAN:
    s_barrier
    {st(3)}
    """)
    for i in range(4):
        a(f"ds_read_b32 v{36+i}, v{24+i} offset:{K1_BASE}")
    a("s_waitcnt vmcnt(0)")
    a(st(4))
    for i in range(4):
        a(f"v_lshl_add_u32 v{8+i}, v{28+i}, 20, v{8+i}")
    a("s_waitcnt lgkmcnt(0)")
    for i in range(4):
        a(f"""
        v_add_u32 v{36+i}, v{36+i}, v{32+i}
        v_mul_u32_u24 v{36+i}, 12, v{36+i}
        ds_write2_b32 v{36+i}, v{12+2*i}, v{13+2*i} offset0:0 offset1:1
        ds_write_b32 v{36+i}, v{8+i} offset:8
        """)
    a(f"""
    v_lshlrev_b32 v22, 4, v0
    s_mul_i32 s3, s2, {CH*12}
    v_add_u32 v1, s3, v22
    s_waitcnt lgkmcnt(0)
    s_barrier
    {st(5)}
    ds_read_b128 v[4:7], v22
    ds_read_b128 v[8:11], v22 offset:12800
    ds_read_b128 v[12:15], v22 offset:25600
    v_add_u32 v2, 12800, v1
    v_add_u32 v3, 25600, v1
    s_waitcnt lgkmcnt(2)
    buffer_store_dwordx4 v[4:7], v1, s[48:51], 0 offen nt
    s_waitcnt lgkmcnt(1)
    buffer_store_dwordx4 v[8:11], v2, s[48:51], 0 offen nt
    s_waitcnt lgkmcnt(0)
    buffer_store_dwordx4 v[12:15], v3, s[48:51], 0 offen nt
    {st(6)}
    {"s_waitcnt vmcnt(0)" if K1ST else ""}
    {st(7)}
    {st_out()}
    s_endpgm
    """)
    a.label("K1_IMG")
    a(f"""
    s_cmp_eq_u32 s2, 254
    s_cbranch_scc1 K1_IMGX2
    v_cmp_gt_u32 vcc, 512, v0
    s_and_saveexec_b64 s[4:5], vcc
    s_cbranch_execz K1_END
    s_cmp_ge_u32 s2, 252
    s_cselect_b32 s56, s30, s26
    s_cselect_b32 s57, s31, s27
    s_mov_b32 s58, {133*128}
    s_cselect_b32 s58, {128*128}, s58
    s_cselect_b64 s[8:9], -1, 0
    s_and_b32 s57, s57, 0xffff
    s_mov_b32 s59, 0x20000
    s_cmp_eq_u32 s2, 250
    s_cselect_b32 s6, 64, 0              ; rowadd
    s_cmp_eq_u32 s2, 253
    s_cselect_b32 s7, 64, s6
    s_sub_u32 s3, s2, 250
    s_lshl_b32 s3, s3, 13
    s_add_u32 s3, s3, {WS_IMG}
    v_lshrrev_b32 v1, 7, v0              ; s = op>>1
    v_bfe_u32 v2, v0, 6, 1               ; blk
    v_bfe_u32 v3, v0, 5, 1               ; hh
    v_and_b32 v4, 31, v0                 ; i
    v_bfe_u32 v5, v4, 2, 1
    v_lshlrev_b32 v5, 4, v5
    v_lshrrev_b32 v6, 3, v4
    v_lshl_add_u32 v5, v6, 2, v5
    v_and_b32 v6, 3, v4
    v_add_u32 v5, v5, v6
    v_cndmask_b32 v4, v4, v5, s[8:9]
    v_lshl_add_u32 v4, v2, 5, v4         ; col
    v_lshlrev_b32 v1, 4, v1
    v_lshl_add_u32 v1, v3, 3, v1
    v_add_u32 v1, s7, v1                 ; row0
    v_lshlrev_b32 v1, 7, v1
    v_lshl_add_u32 v1, v4, 1, v1
    """)
    for j in range(8):
        a(f"buffer_load_ushort v{12+j}, v1, s[56:59], 0 offen offset:{128*j}")
    a(f"""
    v_lshl_add_u32 v2, v0, 4, s3
    s_waitcnt vmcnt(0)
    v_lshl_or_b32 v8, v13, 16, v12
    v_lshl_or_b32 v9, v15, 16, v14
    v_lshl_or_b32 v10, v17, 16, v16
    v_lshl_or_b32 v11, v19, 16, v18
    buffer_store_dwordx4 v[8:11], v2, s[48:51], 0 offen
    s_endpgm
K1_IMGX2:
    v_cmp_gt_u32 vcc, 128, v0
    s_and_saveexec_b64 s[4:5], vcc
    s_cbranch_execz K1_END
    """)
    srd(a, 56, 26, 27, 133*128)
    a(f"""
    v_mov_b32 v8, 0
    v_mov_b32 v9, 0
    v_mov_b32 v10, 0
    v_mov_b32 v11, 0
    v_bfe_u32 v2, v0, 6, 1
    v_and_b32 v4, 31, v0
    v_lshl_add_u32 v4, v2, 5, v4
    v_lshlrev_b32 v1, 1, v4
    v_add_u32 v1, {128*128}, v1
    v_lshlrev_b32 v2, 4, v0
    v_add_u32 v2, {IMG_X2}, v2
    v_and_b32 v3, 32, v0
    v_cmp_eq_u32 vcc, 0, v3
    s_and_saveexec_b64 s[6:7], vcc
    buffer_load_ushort v8, v1, s[56:59], 0 offen offset:128
    buffer_load_ushort v12, v1, s[56:59], 0 offen offset:256
    buffer_load_ushort v9, v1, s[56:59], 0 offen offset:384
    buffer_load_ushort v13, v1, s[56:59], 0 offen offset:512
    buffer_load_ushort v10, v1, s[56:59], 0 offen
    s_waitcnt vmcnt(0)
    v_lshl_or_b32 v8, v12, 16, v8
    v_lshl_or_b32 v9, v13, 16, v9
    s_mov_b64 exec, s[6:7]
    buffer_store_dwordx4 v[8:11], v2, s[48:51], 0 offen
K1_END:
    s_endpgm
    """)
    return a.text()
```
